```python
import torch

def _softmax(x, axis=-1):
    return torch.softmax(x, dim=axis)
def _gelu(x):
    return torch.nn.functional.gelu(x, approximate="tanh")
def _silu(x):
    return torch.nn.functional.silu(x)
def _sigmoid(x):
    return torch.sigmoid(x)
def _layernorm(x, axis=-1, eps=1e-5):
    m = x.mean(dim=axis, keepdim=True)
    v = x.var(dim=axis, keepdim=True, unbiased=False)
    return (x - m) / torch.sqrt(v + eps)
def _scatter_add(tgt, idx, src, axis=0):
    return tgt.clone().index_add_(axis, idx, src)
def _segment_sum(src, seg, n):
    out = torch.zeros((n,) + src.shape[1:], dtype=src.dtype)
    return out.index_add_(0, seg, src)
def _pad(x, pw):
    flat = tuple(v for pair in reversed(pw) for v in pair)
    return torch.nn.functional.pad(x, flat)

kernel_name = 'parallel_sum__ssm_conv_h3__geglu_ffn__prompt'

def setup_inputs():

    _w = (lambda a: (lambda t: t.to(torch.bfloat16) if t.is_floating_point() else t)(torch.as_tensor(a)))
    def _A_setup():
        B, S, D = 1, 2048, 512
        ks = 4
        return {
            "q": _w((lambda *s: torch.randn(*s, dtype=torch.bfloat16) * 0.05)(B, S, D)),
            "k": _w((lambda *s: torch.randn(*s, dtype=torch.bfloat16) * 0.8)(B, S, D)),
            "v": _w((lambda *s: torch.randn(*s, dtype=torch.bfloat16) * 0.8)(B, S, D)),
            "shift_k": _w((lambda *s: torch.randn(*s, dtype=torch.bfloat16) * 0.8)(D, ks) * 0.5),
            "ssm_k": _w((lambda *s: torch.randn(*s, dtype=torch.bfloat16) * 0.8)(D, S) * (1.0 / S ** 0.5)),
            "ssm_D": _w((lambda *s: torch.randn(*s, dtype=torch.bfloat16) * 0.8)(D)),
        }
    _A_in = _A_setup()

    def _B_setup():
        B, S, D, F = 1, 2048, 512, 1792
        return {
            "x": _w((lambda *s: torch.randn(*s, dtype=torch.bfloat16) * 0.05)(B, S, D)),
            "w_gate": _w((lambda *s: torch.randn(*s, dtype=torch.bfloat16) * 0.05)(D, F)),
            "w_up": _w((lambda *s: torch.randn(*s, dtype=torch.bfloat16) * 0.05)(D, F)),
            "w_down": _w((lambda *s: torch.randn(*s, dtype=torch.bfloat16) * 0.05)(F, D)),
        }
    _B_in = _B_setup()

    return {
        "A_q": _A_in["q"],
        "A_k": _A_in["k"],
        "A_v": _A_in["v"],
        "A_shift_k": _A_in["shift_k"],
        "A_ssm_k": _A_in["ssm_k"],
        "A_ssm_D": _A_in["ssm_D"],
        "B_x": _B_in["x"],
        "B_w_gate": _B_in["w_gate"],
        "B_w_up": _B_in["w_up"],
        "B_w_down": _B_in["w_down"],
    }

def reference(A_q, A_k, A_v, A_shift_k, A_ssm_k, A_ssm_D, B_x, B_w_gate, B_w_up, B_w_down):
    def _A_ref(q, k, v, shift_k, ssm_k, ssm_D):
        B, S, D = q.shape
        ks = shift_k.shape[-1]
        k_pad = _pad(k, ((0, 0), (ks - 1, 0), (0, 0)))
        k_shift = torch.zeros_like(k)
        for t in range(ks):
            k_shift = k_shift + k_pad[:, t:t + S, :] * shift_k[:, ks - 1 - t][None, None, :]
        kv = k_shift * v
        L = 2 * S
        kv_pad = _pad(kv, ((0, 0), (0, S), (0, 0)))
        kf_pad = _pad(ssm_k, ((0, 0), (0, S)))
        kv_f = (lambda x, axes=(-2,-1): torch.fft.rfft2(x.float(), dim=axes))(kv_pad[:, None, :, :], axes=(1, 2))
        kf_f = (lambda x, axes=(-2,-1): torch.fft.rfft2(x.float(), dim=axes))(kf_pad[:, None, :], axes=(1, 2))
        kf_f = (lambda x, *d: x.permute(*d))(kf_f, 1, 2, 0)
        y_f = kv_f * kf_f[None, :, :, :]
        y = (lambda x, s, axes=(-2,-1): torch.fft.irfft2(x, s=s, dim=axes).to(torch.bfloat16))(y_f, (1, L), axes=(1, 2))[:, 0, :S, :]
        y = y + kv * ssm_D[None, None, :]
        return q * y

    def _B_ref(x, w_gate, w_up, w_down):
        return (_gelu(x @ w_gate) * (x @ w_up)) @ w_down

    x = A_q
    xn = _layernorm(x, axis=-1)
    return x + _A_ref(xn, A_k, A_v, A_shift_k, A_ssm_k, A_ssm_D) + _B_ref(xn, B_w_gate, B_w_up, B_w_down)
```

```python
WS_H=0; WS_WD=0x800000; WS_U=0xA00000; WS_Y=0xC00000; WS_ST=0xE00000; WS_FL=0xE10000; WS_SIZE=0x1000000
C0=-2.302208198; C1=-0.10294324
import struct
def f2u(x): return "0x%08x" % struct.unpack("<I", struct.pack("<f", x))[0]
class Asm:
    def __init__(s): s.L=[]
    def __call__(s, t):
        for l in t.strip("\n").split("\n"): s.L.append("  "+l.strip() if not l.strip().endswith(":") else l.strip())
def vr(a,n): return f"v[{a}:{a+n-1}]"
def srd(A, s, size):
    A(f"s_mov_b32 s{s+2}, {size}\ns_mov_b32 s{s+3}, 0x20000")
def stamp(A, i, on):
    if on: A(f"s_memrealtime s[{70+2*i}:{71+2*i}]")
def stamp_store(A, on, kidx, first, n, total, tag, vt=200):
    if not on: return
    A(f"s_waitcnt lgkmcnt(0)\ns_add_u32 s90, s90, {0x08000000 + kidx*(1<<20)}\ns_addc_u32 s91, s91, 0")
    A(f"s_mul_i32 s92, s2, {total*8}\ns_add_u32 s92, s92, {first*8}\nv_mov_b32 v{vt}, s92\ns_mov_b64 exec, 1")
    for i in range(n):
        A(f"v_mov_b32 v{vt+2}, s{70+2*i}\nv_mov_b32 v{vt+3}, s{71+2*i}\nglobal_store_dwordx2 v{vt}, v[{vt+2}:{vt+3}], s[90:91] offset:{i*8}\ns_nop 1")

def gen_k1(A, ST):
    XS=[0,16384,32768]; WB=49152; STA=147456
    A("k1_kernel:")
    stamp(A,0,ST)
    A("s_cmp_ge_u32 s2, 256\ns_cbranch_scc1 K1_end")
    A("s_load_dwordx2 s[4:5], s[0:1], 0\ns_load_dwordx4 s[8:11], s[0:1], 56\ns_load_dwordx2 s[16:17], s[0:1], 96")
    A("s_getpc_b64 s[24:25]\nK1_pc:\nv_lshlrev_b32 v1, 6, v0\nv_cmp_gt_u32 vcc, K_codeend-K1_pc-64, v1\ns_mov_b64 exec, vcc\ns_cbranch_execz K1_nopf")
    A("global_load_dword v255, v1, s[24:25]\nK1_nopf:\ns_mov_b64 exec, -1")
    A("v_lshrrev_b32 v1, 6, v0\nv_and_b32 v23, 63, v0\ns_and_b32 s26, s2, 7\ns_lshr_b32 s27, s2, 3\nv_readfirstlane_b32 s20, v1")
    A("s_cmp_ge_u32 s27, 28\ns_cbranch_scc1 K1_pre")
    A("s_and_b32 s28, s26, 3\ns_lshl_b32 s28, s28, 2\ns_and_b32 s30, s27, 3\ns_add_u32 s28, s28, s30")
    A("s_lshr_b32 s29, s26, 2\ns_mul_i32 s29, s29, 7\ns_lshr_b32 s30, s27, 2\ns_add_u32 s29, s29, s30")
    A("s_lshr_b32 s31, s20, 2")
    A("v_lshrrev_b32 v24, 4, v23\nv_and_b32 v25, 15, v23")
    A("v_lshlrev_b32 v26, 2, v24\ns_lshl_b32 s30, s31, 1\nv_or_b32 v26, s30, v26\nv_xor_b32 v26, v26, v25\nv_lshlrev_b32 v26, 4, v26")
    A("s_and_b32 s30, s20, 3\ns_lshl_b32 s30, s30, 4\nv_add_u32 v27, s30, v24\nv_mul_u32_u24 v27, 3584, v27\nv_add_u32 v10, v27, v26")
    for j in range(1,4): A(f"v_add_u32 v{10+j}, {13312*j}, v10")
    A("v_lshrrev_b32 v26, 3, v23\nv_and_b32 v27, 7, v23\nv_xor_b32 v27, v27, v24\nv_lshlrev_b32 v27, 4, v27")
    A("v_lshl_add_u32 v14, v26, 10, v27\nv_xor_b32 v15, 64, v14\nv_add_u32 v15, 7168, v15")
    A("s_lshl_b32 s21, s28, 17\ns_lshl_b32 s30, s20, 14\ns_add_u32 s21, s21, s30\ns_lshl_b32 s22, s29, 8")
    A(f"s_lshl_b32 s32, s20, 11\ns_lshl_b32 s33, s20, 12\ns_add_u32 s33, s33, {WB}")
    A("s_waitcnt lgkmcnt(0)")
    if ST: A("s_mov_b64 s[90:91], s[16:17]")
    A("s_cmp_eq_u32 s31, 1\ns_cselect_b32 s8, s10, s8\ns_cselect_b32 s9, s11, s9")
    srd(A,4,2097152); srd(A,8,1835008); srd(A,16,WS_SIZE)
    def dma(c):
        sl=c%3
        o=[f"s_add_u32 m0, s33, {sl*32768}\ns_nop 0"]
        for j in range(4): o.append(f"buffer_load_dwordx4 v{10+j}, s[8:11], s22 offen offset:{1024*j} lds")
        o.append(f"s_add_u32 m0, s32, {XS[sl]}\ns_add_u32 s22, s22, {64*3584}")
        for j in range(2): o.append(f"buffer_load_dwordx4 v{14+j}, s[4:7], s21 offen offset:{1024*j} lds")
        o.append("s_add_u32 s21, s21, 128")
        return o
    for c in range(3):
        for l in dma(c): A(l)
    A("s_and_b32 s34, s20, 1\ns_lshr_b32 s35, s20, 1\ns_lshl_b32 s36, s34, 1\ns_xor_b32 s36, s36, s35")
    A(f"v_lshlrev_b32 v1, 2, v0\nv_mov_b32 v2, 0\nv_add_u32 v1, {STA}, v1\nds_write_b32 v1, v2")
    A("v_and_b32 v26, 1, v24\nv_lshrrev_b32 v27, 5, v23\nv_bfe_u32 v28, v23, 2, 2")
    A("v_lshl_add_u32 v29, v27, 3, v28\nv_lshlrev_b32 v29, 8, v29\nv_lshl_add_u32 v29, v26, 14, v29")
    A(f"v_and_b32 v30, 3, v23\nv_lshl_add_u32 v29, v30, 3, v29\nv_add_u32 v29, {WB}, v29")
    A("v_lshl_add_u32 v30, v28, 1, v26")
    for b in range(2):
        A(f"s_lshl_b32 s30, s35, 1\ns_add_u32 s30, s30, {b}\nv_xor_b32 v31, s30, v30\nv_lshl_add_u32 v31, v31, 5, v29")
        for t in range(4):
            A(f"s_xor_b32 s30, s36, {t}\ns_lshl_b32 s30, s30, 12\nv_add_u32 v{128+t*2+b}, s30, v31\nv_add_u32 v{136+t*2+b}, 65536, v{128+t*2+b}")
    A("v_and_b32 v26, 31, v23\ns_lshl_b32 s30, s34, 13\nv_lshlrev_b32 v28, 7, v26\nv_add_u32 v28, s30, v28\nv_bfe_u32 v29, v23, 1, 3\nv_xor_b32 v29, v29, v27")
    for t in range(4):
        A(f"s_xor_b32 s30, s36, {t}\ns_lshl_b32 s30, s30, 1\nv_xor_b32 v30, s30, v29\nv_lshl_add_u32 v{6+t}, v30, 4, v28")
    for r in range(16,22): A(f"v_mov_b32 v{r}, 0")
    A("s_mov_b32 s37, 0x3f803f80")
    A(f"s_lshl_b32 s30, s34, 8\ns_add_u32 s30, s30, {STA}\nv_lshl_add_u32 v2, v26, 2, s30\ns_lshl_b32 s30, s35, 8\ns_add_u32 s30, s30, {STA+1024}\nv_lshl_add_u32 v3, v26, 2, s30")
    def reads(T):
        c,t=T//4,T%4; sl=c%3; buf=T&1; o=[]
        for sb in range(2):
            o.append(f"ds_read_b128 {vr(48+buf*8+sb*4,4)}, v{6+t} offset:{XS[sl]+sb*4096}")
        for b in range(2):
            for h in range(2):
                o.append(f"ds_read_b64_tr_b16 {vr(32+buf*8+b*4+h*2,2)}, v{128+(8 if sl==2 else 0)+t*2+b} offset:{(sl%2)*32768+h*1024}")
        return [o[0],o[2],o[3],o[1],o[4],o[5]]
    def dots(T):
        t=T%4; buf=T&1; o=[]
        for i in range(4):
            if t<2:
                r=48+buf*8+t*4+i
                o.append(f"v_dot2c_f32_bf16 v{16+t}, s37, v{r}"); o.append(f"v_dot2c_f32_bf16 v{18+t}, v{r}, v{r}")
            else:
                o.append(f"v_dot2c_f32_bf16 v20, s37, v{32+buf*8+i}"); o.append(f"v_dot2c_f32_bf16 v21, s37, v{32+buf*8+4+i}")
        return o
    def mf(T):
        buf=T&1; o=[]
        for (b,sb) in [(0,0),(0,1),(1,0),(1,1)]:
            acc=vr(64+16*(2*b+sb),16)
            o.append(f"v_mfma_f32_32x32x16_bf16 {acc}, {vr(32+buf*8+b*4,4)}, {vr(48+buf*8+sb*4,4)}, {acc if T else 0}")
        return o
    A("s_waitcnt vmcnt(12) lgkmcnt(0)\ns_barrier")
    stamp(A,1,ST)
    for l in reads(0): A(l)
    for T in range(32):
        c,t=T//4,T%4
        extra=[]
        if T==31:
            A("s_waitcnt lgkmcnt(0)")
            for l in dots(T): A(l)
            M=mf(T); A(M[0])
            A("ds_add_f32 v2, v16\nds_add_f32 v2, v17 offset:128\nds_add_f32 v2, v18 offset:512\nds_add_f32 v2, v19 offset:640\nds_add_f32 v3, v20\nds_add_f32 v3, v21 offset:128")
            for l in M[1:]: A(l)
            break
        if t==3:
            A(f"s_waitcnt vmcnt({6 if c+2<8 else 0}) lgkmcnt(0)\ns_barrier")
            for l in reads(T+1): A(l)
            if c+3<8: extra=dma(c+3)
        else:
            for l in reads(T+1): A(l)
            A("s_waitcnt lgkmcnt(6)")
        M=mf(T); D=dots(T)
        ex=[extra[0:3],extra[3:5],extra[5:7],extra[7:]]
        for i in range(4):
            A(M[i]); A(D[2*i]); A(D[2*i+1])
            for l in ex[i]: A(l)
    A("s_waitcnt lgkmcnt(0)\ns_barrier")
    stamp(A,2,ST)
    A("ds_read_b32 v16, v2\nds_read_b32 v17, v2 offset:128\nds_read_b32 v18, v2 offset:512\nds_read_b32 v19, v2 offset:640\nds_read_b32 v20, v3\nds_read_b32 v21, v3 offset:128")
    for r in list(range(33,36))+list(range(37,40))+list(range(49,52))+list(range(53,56)): A(f"v_mov_b32 v{r}, 0")
    A("v_cmp_gt_u32 vcc, 32, v23")
    A("s_lshl_b32 s30, s28, 1\ns_add_u32 s30, s30, s34\ns_mul_i32 s30, s30, 112\ns_lshl_b32 s38, s29, 3\ns_add_u32 s30, s30, s38\ns_lshl_b32 s38, s35, 1\ns_add_u32 s30, s30, s38\ns_lshl_b32 s38, s30, 11\nv_lshlrev_b32 v4, 4, v23")
    A("s_waitcnt lgkmcnt(0)")
    inv=f2u(1.0/512)
    for sb in range(2):
        A(f"v_mul_f32 v{16+sb}, {inv}, v{16+sb}\nv_mul_f32 v{18+sb}, {inv}, v{18+sb}")
    for b in range(2):
        A(f"v_cvt_pk_bf16_f32 v5, v{20+b}, v{20+b}\nv_and_b32 v5, 0xffff0000, v5\nv_sub_f32 v22, v{20+b}, v5\nv_cvt_pk_bf16_f32 v5, v5, v22\nv_cndmask_b32 v{32+4*b}, 0, v5, vcc")
    for sb in range(2):
        A(f"v_cvt_pk_bf16_f32 v5, v{16+sb}, v{16+sb}\nv_and_b32 v{140+sb}, 0xffff0000, v5\nv_xor_b32 v{48+4*sb}, 0x80008000, v5")
    A("s_nop 1")
    for (b,sb) in [(0,0),(0,1),(1,0),(1,1)]:
        acc=vr(64+16*(2*b+sb),16)
        A(f"v_mfma_f32_32x32x16_bf16 {acc}, {vr(32+b*4,4)}, {vr(48+sb*4,4)}, {acc}")
    for sb in range(2):
        s=18+sb
        A(f"v_fma_f32 v{s}, -v{16+sb}, v{16+sb}, v{s}\nv_max_f32 v{s}, 0, v{s}\nv_cvt_pk_bf16_f32 v{s}, v{s}, v{s}\nv_and_b32 v{s}, 0xffff0000, v{s}")
        A(f"v_add_f32 v{s}, {f2u(1e-5)}, v{s}\nv_cvt_pk_bf16_f32 v{s}, v{s}, v{s}\nv_and_b32 v{s}, 0xffff0000, v{s}\nv_sqrt_f32 v{s}, v{s}\ns_nop 0")
        A(f"v_cvt_pk_bf16_f32 v{s}, v{s}, v{s}\nv_and_b32 v{142+sb}, 0xffff0000, v{s}\nv_rcp_f32 v{s}, v{142+sb}\nv_mul_f32 v{152+2*sb}, v{142+sb}, v{142+sb}")
        A(f"v_mul_f32 v{144+2*sb}, {f2u(C0)}, v{s}\nv_mul_f32 v5, v{s}, v{s}\nv_mul_f32 v5, v5, v{s}\nv_mul_f32 v{148+2*sb}, {f2u(C1)}, v5")
        A(f"v_mov_b32 v{145+2*sb}, v{144+2*sb}\nv_mov_b32 v{149+2*sb}, v{148+2*sb}\nv_mov_b32 v{153+2*sb}, v{152+2*sb}")
    for bi,(b,sb) in enumerate([(0,0),(0,1),(1,0),(1,1)]):
        a=64+16*(2*b+sb); T0=160+(bi&1)*8; c0=vr(144+2*sb,2); c1=vr(148+2*sb,2); R=vr(152+2*sb,2)
        for j in range(0,8,2): A(f"v_pk_mul_f32 {vr(T0+j,2)}, {vr(a+j,2)}, {vr(a+j,2)}")
        for j in range(0,8,2): A(f"v_pk_fma_f32 {vr(T0+j,2)}, {vr(T0+j,2)}, {c1}, {c0}")
        for j in range(0,8,2): A(f"v_pk_mul_f32 {vr(T0+j,2)}, {vr(T0+j,2)}, {vr(a+j,2)}")
        for j in range(8): A(f"v_exp_f32 v{T0+j}, v{T0+j}")
        for j in range(0,8,2): A(f"v_pk_mul_f32 {vr(a+j,2)}, {vr(a+j,2)}, {vr(a+8+j,2)}")
        for j in range(0,8,2): A(f"v_pk_fma_f32 {vr(T0+j,2)}, {vr(T0+j,2)}, {R}, {R}")
        for j in range(8): A(f"v_rcp_f32 v{T0+j}, v{T0+j}")
        A("s_nop 0")
        for j in range(0,8,2): A(f"v_pk_mul_f32 {vr(a+j,2)}, {vr(a+j,2)}, {vr(T0+j,2)}")
        for j in range(0,8,2): A(f"v_cvt_pk_bf16_f32 v{a+8+j//2}, v{a+j}, v{a+j+1}")
        A(f"buffer_store_dwordx4 {vr(a+8,4)}, v4, s[16:19], s38 offen offset:{b*2048+sb*1024}")
    A("s_or_b32 s30, s29, s35\ns_cmp_lg_u32 s30, 0\ns_cbranch_scc1 K1_fin")
    A(f"v_cndmask_b32 v140, v141, v140, vcc\nv_cndmask_b32 v141, v143, v142, vcc\ns_lshl_b32 s30, s28, 10\ns_lshl_b32 s38, s34, 9\ns_add_u32 s30, s30, s38\ns_add_u32 s30, s30, {WS_ST}\nv_lshlrev_b32 v4, 3, v23")
    A("buffer_store_dwordx2 v[140:141], v4, s[16:19], s30 offen")
    A("K1_fin:")
    if ST:
        A("s_waitcnt vmcnt(0)"); stamp(A,3,ST); A("s_cmp_lg_u32 s20, 0\ns_cbranch_scc1 K1_end"); stamp_store(A,ST,0,0,4,8,"a")
    A("s_endpgm")
    A("K1_pre:")
    A("s_load_dwordx4 s[40:43], s[0:1], 8\ns_load_dwordx2 s[12:13], s[0:1], 24\ns_load_dwordx2 s[48:49], s[0:1], 72")
    A("s_sub_u32 s28, s27, 28\ns_lshl_b32 s28, s28, 3\ns_add_u32 s28, s28, s26")
    A("v_lshrrev_b32 v24, 4, v23\nv_and_b32 v25, 15, v23")
    A("s_lshl_b32 s30, s28, 16\ns_lshl_b32 s31, s20, 7\ns_add_u32 s30, s30, s31\nv_lshlrev_b32 v2, 14, v24\nv_lshl_add_u32 v2, v25, 2, v2\nv_add_u32 v2, s30, v2\nv_subrev_u32 v3, 3072, v2")
    A("s_lshl_b32 s31, s20, 9\nv_lshl_add_u32 v4, v25, 4, s31")
    for i in range(4): A(f"s_mov_b32 s{52+i}, {4096*i}")
    A("s_waitcnt lgkmcnt(0)")
    if ST: A("s_mov_b64 s[90:91], s[16:17]")
    A("s_mov_b64 s[44:45], s[42:43]")
    srd(A,40,2097152); srd(A,44,2097152); srd(A,12,4096); srd(A,48,1835008); srd(A,16,WS_SIZE)
    KR=[32,72]; VR=[52,92]; SH=[68,108]
    for it in range(2):
        A(f"buffer_load_dwordx4 {vr(SH[it],4)}, v4, s[12:15], 0 offen offset:{it*256}")
        for r in range(3): A(f"buffer_load_dword v{KR[it]+r}, v3, s[40:43], 0 offen offset:{r*1024+it*64}")
        for r in range(16):
            A(f"buffer_load_dword v{KR[it]+3+r}, v2, s[40:43], s{52+r//4} offen offset:{(r%4)*1024+it*64}")
        for r in range(16):
            A(f"buffer_load_dword v{VR[it]+r}, v2, s[44:47], s{52+r//4} offen offset:{(r%4)*1024+it*64}")
    A(f"s_lshl_b32 s30, s28, 16\ns_add_u32 s30, s30, {WS_U}\ns_lshl_b32 s31, s20, 13\ns_add_u32 s56, s30, s31\ns_add_u32 s57, s56, 4096\nv_lshlrev_b32 v5, 8, v25\nv_lshl_add_u32 v5, v24, 5, v5")
    A("v_lshrrev_b32 v6, 5, v23\nv_and_b32 v7, 31, v23\nv_lshlrev_b32 v7, 2, v7\nv_lshlrev_b32 v8, 9, v6\nv_lshl_add_u32 v6, v6, 12, v7\nv_lshl_add_u32 v7, v25, 5, v8\nv_and_b32 v8, 1, v24\nv_lshl_add_u32 v7, v8, 10, v7")
    def kv(it):
        U=112; W=152; S=186
        for j in range(4):
            for e in range(2):
                src=SH[it]+2*e+j//2
                A(f"v_lshlrev_b32 v{S+2*j+e}, 16, v{src}" if j%2==0 else f"v_and_b32 v{S+2*j+e}, 0xffff0000, v{src}")
        for r in range(19):
            A(f"v_lshlrev_b32 v{U+2*r}, 16, v{KR[it]+r}\nv_and_b32 v{U+2*r+1}, 0xffff0000, v{KR[it]+r}")
        for r in range(16): A(f"v_pk_mul_f32 {vr(W+2*r,2)}, {vr(U+2*r,2)}, {vr(S+6,2)}")
        for j in (2,1,0):
            for r in range(16): A(f"v_pk_fma_f32 {vr(W+2*r,2)}, {vr(U+2*(r+3-j),2)}, {vr(S+2*j,2)}, {vr(W+2*r,2)}")
        for r in range(16):
            A(f"v_lshlrev_b32 v{U+2*r}, 16, v{VR[it]+r}\nv_and_b32 v{U+2*r+1}, 0xffff0000, v{VR[it]+r}")
        for r in range(16): A(f"v_pk_mul_f32 {vr(W+2*r,2)}, {vr(W+2*r,2)}, {vr(U+2*r,2)}")
        P=KR[it]
        for e in range(2):
            for g in range(2):
                for i in range(4):
                    A(f"v_cvt_pk_bf16_f32 v{P+e*8+g*4+i}, v{W+2*(8*g+7-2*i)+e}, v{W+2*(8*g+6-2*i)+e}")
                A(f"buffer_store_dwordx4 {vr(P+e*8+g*4,4)}, v5, s[16:19], s{56+it} offen offset:{e*128+g*16}")
    A("s_waitcnt vmcnt(36)")
    kv(0)
    A("s_and_b32 s30, s28, 3\ns_mul_i32 s59, s30, 28\ns_lshr_b32 s60, s28, 2\ns_lshl_b32 s60, s60, 7\ns_mov_b32 s64, 0x05040100\ns_mov_b32 s65, 0x07060302")
    for i in range(4):
        A((f"s_add_u32 s30, s20, {8*i}" if i<3 else "s_and_b32 s30, s20, 3\ns_add_u32 s30, s30, 24")+f"\ns_mul_i32 s{66+i}, s28, 28\ns_add_u32 s{66+i}, s{66+i}, s30\ns_lshl_b32 s{66+i}, s{66+i}, 11\ns_add_u32 s{66+i}, s{66+i}, {WS_WD}")
        A("s_add_u32 s30, s30, s59\ns_lshl_b32 s30, s30, 14\ns_add_u32 s30, s30, s60\ns_add_u32 s31, s30, 8192")
        for j in range(8):
            A(f"buffer_load_dword v{200+8*i+j}, v6, s[48:51], s{30+j//4} offen offset:{(j&3)*1024}")
    A("s_waitcnt vmcnt(36)")
    kv(1)
    A("s_waitcnt vmcnt(4)")
    for i in range(4):
        for e in range(2):
            for k in range(4): A(f"v_perm_b32 v{112+8*i+4*e+k}, v{200+8*i+2*k+1}, v{200+8*i+2*k}, s{64+e}")
            A(f"buffer_store_dwordx4 {vr(112+8*i+4*e,4)}, v7, s[16:19], s{66+i} offen offset:{16*e}")
    A(f"s_cmp_ge_u32 s28, 2\ns_cbranch_scc1 K1_pfin\ns_lshl_b32 s30, s28, 11\ns_add_u32 s30, s30, {WS_FL}\nv_lshlrev_b32 v1, 2, v0\nv_mov_b32 v2, 0\nbuffer_store_dword v2, v1, s[16:19], s30 offen")
    A("K1_pfin:")
    if ST:
        A("s_waitcnt vmcnt(0)"); stamp(A,1,ST); stamp(A,2,ST); stamp(A,3,ST); A("s_cmp_lg_u32 s20, 0\ns_cbranch_scc1 K1_end"); stamp_store(A,ST,0,0,4,8,"b", vt=240)
    A("K1_end:\ns_endpgm")
```

```python
from gen1 import *
HC=0; HCH=33280; UP=66560; EX=78848; PA=95232; CN=160768; K2_LDS=160800
def spin(A, tag, vaddr, target, vt="v30"):
    A(f"s_mov_b32 s62, 0x40000\n{tag}:\nds_read_b32 {vt}, {vaddr}\ns_sub_u32 s62, s62, 1\ns_waitcnt lgkmcnt(0)\nv_readfirstlane_b32 s63, {vt}\ns_cmp_eq_u32 s62, 0\ns_cbranch_scc1 {tag}_x\ns_cmp_lt_u32 s63, {target}\ns_cbranch_scc1 {tag}\n{tag}_x:")
def gen_k2(A, ST, DEPTH=8):
    A("k2_kernel:")
    stamp(A,0,ST)
    A("s_cmp_ge_u32 s2, 256\ns_cbranch_scc1 K2_end")
    A("s_load_dwordx2 s[4:5], s[0:1], 0\ns_load_dwordx4 s[8:11], s[0:1], 32\ns_load_dwordx2 s[16:17], s[0:1], 96\ns_load_dwordx2 s[12:13], s[0:1], 80")
    A("v_lshrrev_b32 v1, 6, v0\nv_and_b32 v23, 63, v0\ns_and_b32 s26, s2, 7\ns_lshr_b32 s27, s2, 3\nv_readfirstlane_b32 s20, v1")
    A(f"v_mov_b32 v2, {CN}\nv_mov_b32 v4, 0\nv_mov_b32 v5, 0\nv_mov_b32 v6, 0\nv_mov_b32 v7, 0\nds_write_b128 v2, v[4:7]")
    A("s_and_b32 s28, s26, 3\ns_lshl_b32 s28, s28, 3\ns_and_b32 s30, s27, 7\ns_add_u32 s28, s28, s30")
    A("s_lshr_b32 s29, s26, 2\ns_lshl_b32 s29, s29, 2\ns_lshr_b32 s30, s27, 3\ns_add_u32 s29, s29, s30")
    A("s_lshr_b32 s30, s20, 1\ns_lshl_b32 s30, s30, 4\nv_and_b32 v24, 15, v23\nv_add_u32 v24, s30, v24\ns_and_b32 s30, s20, 1\ns_lshl_b32 s30, s30, 2\nv_lshrrev_b32 v25, 4, v23\nv_add_u32 v25, s30, v25")
    A("v_lshlrev_b32 v8, 10, v24\nv_lshl_add_u32 v8, v25, 4, v8\nv_lshlrev_b32 v9, 3, v24\ns_lshl_b32 s21, s28, 16\ns_lshl_b32 s30, s29, 7\ns_add_u32 s21, s21, s30")
    A(f"s_lshl_b32 s22, s28, 9\ns_add_u32 s22, s22, {WS_ST}\nv_lshlrev_b32 v3, 4, v23")
    A("s_waitcnt lgkmcnt(0)\ns_barrier")
    if ST: A("s_mov_b64 s[90:91], s[16:17]")
    srd(A,4,2097152); srd(A,12,2097152); srd(A,16,WS_SIZE)
    A("s_cmp_ge_u32 s20, 4\ns_cbranch_scc1 K2_conv")
    A(f"s_mul_i32 s30, s20, {28*2048}\ns_mul_i32 s32, s29, {112*2048}\ns_add_u32 s32, s32, s30\ns_add_u32 s32, s32, {WS_WD}\ns_mul_i32 s33, s28, {112*2048}\ns_add_u32 s33, s33, s30")
    RB=256-16*DEPTH
    def ld(t):
        r=RB+16*(t%DEPTH); o=(t&1)*2048
        L=[f"buffer_load_dwordx4 {vr(r,4)}, v3, s[16:19], s32 offen offset:{o}", f"buffer_load_dwordx4 {vr(r+8,4)}, v3, s[16:19], s33 offen offset:{o}",
           f"buffer_load_dwordx4 {vr(r+12,4)}, v3, s[16:19], s33 offen offset:{o+1024}", f"buffer_load_dwordx4 {vr(r+4,4)}, v3, s[16:19], s32 offen offset:{o+1024}"]
        if t&1: L[3]+="\ns_add_u32 s32, s32, 4096\ns_add_u32 s33, s33, 4096"
        return L
    for t in range(DEPTH):
        for l in ld(t): A(l)
    A("buffer_load_dwordx4 v[12:15], v8, s[4:7], s21 offen\nbuffer_load_dwordx2 v[10:11], v9, s[16:19], s22 offen")
    A(f"v_and_b32 v26, 31, v23\nv_lshrrev_b32 v27, 5, v23\nv_and_b32 v28, 15, v23\nv_xor_b32 v28, v28, v27\ns_lshl_b32 s30, s20, 14\ns_add_u32 s30, s30, {PA}\nv_lshl_add_u32 v26, v26, 8, s30")
    for i in range(8): A(f"v_xor_b32 v29, {2*i}, v28\nv_lshl_add_u32 v{32+i}, v29, 4, v26")
    for t in range(28):
        r=RB+16*(t%DEPTH)
        out=4*(min(28,t+DEPTH)-t-1)+(2 if t<DEPTH else 0)
        A(f"s_waitcnt vmcnt({out})")
        if t==0: stamp(A,1,ST)
        M=[]
        for (db,sb) in [(0,0),(0,1),(1,1),(1,0)]:
            acc=vr(64-16*0+16*(2*db+sb),16)
            M.append(f"v_mfma_f32_32x32x16_bf16 {acc}, {vr(r+4*db,4)}, {vr(r+8+4*sb,4)}, {acc if t else 0}")
        for m in M: A(m)
        if t+DEPTH<28:
            for l in ld(t+DEPTH): A(l)
    A("s_nop 7\ns_nop 3")
    for (db,sb) in [(0,0),(0,1),(1,1),(1,0)]:
        for q in range(4): A(f"ds_write_b128 v{32+4*db+q}, {vr(64+16*(2*db+sb)+4*q,4)} offset:{sb*8192}")
    stamp(A,2,ST)
    A("s_branch K2_final")
    A("K2_conv:")
    A("s_bfe_u32 s34, s20, 0x10001\ns_and_b32 s35, s20, 1\ns_lshl_b32 s36, s2, 1\ns_add_u32 s36, s36, s34")
    A("s_lshl_b32 s30, s36, 12\ns_add_u32 s40, s8, s30\ns_addc_u32 s41, s9, 0"); srd(A,40,4096)
    A("s_lshl_b32 s30, s36, 1\ns_and_b32 s30, s30, -4\ns_load_dword s37, s[10:11], s30")
    A("s_lshl_b32 s30, s35, 10\ns_sub_u32 s30, s30, 16\nv_add_u32 v26, s30, v3\nv_max_i32 v27, 0, v26\nv_add_u32 v28, 16, v26")
    X=[128,160]
    for it in range(2):
        for q in range(4): A(f"buffer_load_dwordx4 {vr(X[it]+4*q,4)}, v27, s[40:43], 0 offen offset:{4*q}" if it==0 else f"buffer_load_dwordx4 {vr(X[it]+4*q,4)}, v28, s[40:43], 0 offen offset:{2048-16+4*q}")
        A(f"buffer_load_dwordx4 {vr(X[it]+16,4)}, v28, s[40:43], 0 offen offset:{2048*it}")
    A(f"v_lshrrev_b32 v29, 1, v23\nv_lshlrev_b32 v29, 16, v29\nv_and_b32 v30, 1, v23\nv_lshl_add_u32 v29, v30, 6, v29\ns_lshl_b32 s30, s36, 7\ns_lshl_b32 s31, s35, 5\ns_add_u32 s30, s30, s31\ns_add_u32 s30, s30, {WS_U}\ns_add_u32 s31, s30, 16")
    A(f"s_mul_i32 s38, s34, 6144\ns_add_u32 s38, s38, {UP}\ns_mul_i32 s39, s35, 3072\ns_add_u32 s39, s39, s38\ns_add_u32 m0, s39, 512\ns_nop 0\nbuffer_load_dwordx4 v29, s[16:19], s30 offen lds\ns_add_u32 m0, s39, 2048\ns_nop 0\nbuffer_load_dwordx4 v29, s[16:19], s31 offen lds")
    A("buffer_load_dwordx4 v[12:15], v8, s[4:7], s21 offen\nbuffer_load_dwordx2 v[10:11], v9, s[16:19], s22 offen")
    A("v_lshrrev_b32 v27, 5, v23\nv_and_b32 v30, 31, v23\nv_mul_u32_u24 v16, 1536, v27\nv_lshl_add_u32 v16, v30, 4, v16\nv_add_u32 v16, s39, v16\nds_write_b128 v16, v[4:7]")
    A(f"s_mul_i32 s44, s34, {HCH}\nv_and_b32 v31, 7, v23\nv_mul_u32_u24 v31, 4160, v31\nv_add_u32 v31, s44, v31\nv_lshrrev_b32 v17, 3, v23\nv_min_u32 v17, 2, v17\nv_lshl_add_u32 v17, v17, 4, v31\nds_write_b128 v17, v[4:7]")
    A("v_bfe_u32 v17, v23, 3, 2\nv_sub_u32 v17, v17, v27\ns_lshl_b32 s30, s35, 1\ns_sub_u32 s30, 3, s30\nv_add_u32 v17, s30, v17\nv_lshl_add_u32 v17, v17, 4, v31")
    A(f"v_add_u32 v18, 64, v26\nv_add_u32 v18, s44, v18\nv_mov_b32 v19, {CN}\nv_lshl_add_u32 v19, s34, 3, v19\nv_mov_b32 v20, 1")
    A("s_waitcnt vmcnt(9)")
    A("s_cmp_lg_u32 s35, 0\ns_cbranch_scc1 K2_nofix\ns_mov_b64 exec, 1")
    for q in range(4):
        for k in range(4):
            A(f"v_mov_b32 v{128+4*q+k}, " + ("0" if q+k<4 else f"v{144+q+k-4}"))
    A("s_mov_b64 exec, -1\nK2_nofix:")
    for it in range(2):
        if it==1: A("s_waitcnt vmcnt(4)")
        F=192+16*it
        for q in range(4):
            A(f"ds_write_b128 v18, {vr(X[it]+4*q+4,4)} offset:{(2*q+1)*4160+it*2048}")
            for k in range(4): A(f"v_alignbit_b32 v{F+4*q+k}, v{X[it]+4*q+4+k}, v{X[it]+4*q+k}, 16")
            A(f"ds_write_b128 v18, {vr(F+4*q,4)} offset:{(2*q)*4160+it*2048}")
    A("s_waitcnt vmcnt(2) lgkmcnt(0)\ns_mov_b64 exec, 1\nds_add_u32 v19, v20\ns_mov_b64 exec, -1")
    spin(A,"K2_s1","v19",2)
    stamp(A,1,ST)
    NB=3
    def rd(d):
        r=128+16*(d%NB)
        return [f"ds_read_b128 {vr(r,4)}, v17 offset:{64*d}", f"ds_read_b128 {vr(r+8,4)}, v16 offset:{(32-d)*16}",
                f"ds_read_b128 {vr(r+4,4)}, v17 offset:{64*d+2048}", f"ds_read_b128 {vr(r+12,4)}, v16 offset:{(64-d)*16}"]
    for d in range(NB-1):
        for l in rd(d): A(l)
    a0=vr(64,16); a1=vr(80,16); a2=vr(96,16)
    for d in range(32):
        r=128+16*(d%NB)
        if d+NB-1<32:
            for l in rd(d+NB-1): A(l)
        A(f"s_waitcnt lgkmcnt({4*min(NB-1,31-d)})")
        A(f"v_mfma_f32_32x32x16_bf16 {a0}, {vr(r,4)}, {vr(r+8,4)}, {a0 if d else 0}")
        A(f"v_mfma_f32_32x32x16_bf16 {a1}, {vr(r+4,4)}, {vr(r+8,4)}, {a1 if d else 0}")
        A(f"v_mfma_f32_32x32x16_bf16 {a1}, {vr(r,4)}, {vr(r+12,4)}, {a1}")
    stamp(A,2,ST)
    A(f"s_sub_u32 s45, s20, 4\ns_lshl_b32 s46, s45, 12\ns_add_u32 s46, s46, {EX}\ns_xor_b32 s30, s45, 1\ns_lshl_b32 s30, s30, 12\ns_add_u32 s30, s30, {EX}\nv_add_u32 v21, s30, v3\nv_add_u32 v22, s46, v3")
    A("v_and_b32 v30, 31, v23\nv_lshlrev_b32 v26, 4, v30\nv_lshlrev_b32 v31, 3, v27\nv_sub_u32 v26, v26, v31\ns_lshl_b32 s30, s35, 9\ns_add_u32 s30, s30, s38\ns_add_u32 s30, s30, 520\nv_add_u32 v26, s30, v26")
    for q in range(4): A(f"ds_read_b64 {vr(112+2*q,2)}, v26 offset:{q*1536}")
    A("s_nop 1\ns_cmp_lg_u32 s35, 0\ns_cbranch_scc1 K2_ex1")
    for q in range(4): A(f"ds_write_b128 v21, {vr(80+4*q,4)} offset:{q*1024}")
    A("s_branch K2_ex2\nK2_ex1:")
    for q in range(4): A(f"ds_write_b128 v21, {vr(64+4*q,4)} offset:{q*1024}")
    A("s_nop 1")
    for r in range(16): A(f"v_mov_b32 v{64+r}, v{80+r}")
    A("K2_ex2:\ns_waitcnt lgkmcnt(0)\ns_mov_b64 exec, 1\nds_add_u32 v19, v20 offset:4\ns_mov_b64 exec, -1\nv_add_u32 v19, 4, v19")
    A(f"v_lshrrev_b32 v28, 1, v30\nv_lshlrev_b32 v28, 16, v28\nv_and_b32 v29, 1, v30\nv_lshl_add_u32 v28, v29, 6, v28\nv_add_u32 v28, v28, v31\ns_lshl_b32 s47, s35, 20\ns_lshl_b32 s30, s36, 7\ns_add_u32 s47, s47, s30\ns_add_u32 s47, s47, {WS_Y}")
    A("s_lshl_b32 s30, s37, 16\ns_and_b32 s31, s37, 0xffff0000\ns_cmp_eq_u32 s34, 0\ns_cselect_b32 s37, s30, s31")
    for q in range(4):
        for e in range(4):
            src=112+2*q+(3-e)//2
            A(f"v_and_b32 v{96+4*q+e}, 0xffff0000, v{src}" if (3-e)&1 else f"v_lshlrev_b32 v{96+4*q+e}, 16, v{src}")
    spin(A,"K2_s2","v19",2,vt="v29")
    for q in range(4): A(f"ds_read_b128 {vr(80+4*q,4)}, v22 offset:{q*1024}")
    for r in range(16): A(f"v_fma_f32 v{64+r}, s37, v{96+r}, v{64+r}")
    for q in range(4):
        A(f"s_waitcnt lgkmcnt({3-q})")
        for e in range(4): A(f"v_add_f32 v{64+4*q+e}, v{64+4*q+e}, v{80+4*q+e}")
        A(f"v_cvt_pk_bf16_f32 v{96+2*q}, v{64+4*q}, v{64+4*q+1}\nv_cvt_pk_bf16_f32 v{97+2*q}, v{64+4*q+2}, v{64+4*q+3}")
        A(f"buffer_store_dwordx2 {vr(96+2*q,2)}, v28, s[16:19], s47 offen offset:{q*16} sc1")
    A(f"s_lshl_b32 s30, s35, 9\ns_add_u32 s30, s30, s36\ns_lshl_b32 s30, s30, 2\ns_add_u32 s30, s30, {WS_FL}\nv_mov_b32 v29, 0")
    A("s_waitcnt vmcnt(0)\ns_mov_b64 exec, 1\nbuffer_store_dword v20, v29, s[16:19], s30 offen sc1\ns_mov_b64 exec, -1")
    stamp(A,3,ST)
    A(f"s_lshr_b32 s30, s28, 4\ns_lshl_b32 s30, s30, 11\ns_lshl_b32 s31, s29, 8\ns_add_u32 s30, s30, s31\ns_lshl_b32 s31, s45, 6\ns_add_u32 s30, s30, s31\ns_add_u32 s30, s30, {WS_FL}\nv_and_b32 v29, 15, v23\nv_lshlrev_b32 v29, 2, v29")
    A(f"s_lshl_b32 s47, s28, 16\ns_lshl_b32 s31, s29, 13\ns_add_u32 s47, s47, s31\ns_lshl_b32 s31, s45, 11\ns_add_u32 s47, s47, s31\ns_add_u32 s47, s47, {WS_Y}")
    A("s_mov_b32 s62, 0x8000\nK2_poll:\nbuffer_load_dword v30, v29, s[16:19], s30 offen sc1\ns_sub_u32 s62, s62, 1\ns_waitcnt vmcnt(0)\nv_cmp_ne_u32 vcc, 1, v30\ns_cmp_eq_u32 s62, 0\ns_cbranch_scc1 K2_pollx\ns_nop 1\ns_cbranch_vccnz K2_poll\nK2_pollx:")
    A("buffer_load_dwordx4 v[64:67], v3, s[16:19], s47 offen sc1\nbuffer_load_dwordx4 v[68:71], v3, s[16:19], s47 offen offset:1024 sc1")
    A("s_waitcnt vmcnt(0)\nds_write_b128 v22, v[64:67]\nds_write_b128 v22, v[68:71] offset:1024")
    stamp(A,4,ST)
    A("K2_final:")
    A(f"v_and_b32 v26, 15, v24\nv_lshlrev_b32 v27, 1, v25\nv_xor_b32 v26, v26, v27\nv_lshlrev_b32 v27, 8, v24\nv_add_u32 v27, {PA}, v27\nv_lshl_add_u32 v40, v26, 4, v27\nv_xor_b32 v41, 16, v40")
    A(f"v_lshrrev_b32 v26, 1, v25\nv_lshlrev_b32 v26, 12, v26\nv_and_b32 v27, 1, v25\nv_lshl_add_u32 v26, v27, 10, v26\nv_bfe_u32 v27, v23, 2, 2\nv_lshl_add_u32 v26, v27, 7, v26\nv_and_b32 v27, 3, v23\nv_lshl_add_u32 v26, v27, 3, v26")
    A(f"s_lshr_b32 s30, s20, 1\ns_lshl_b32 s30, s30, 5\ns_add_u32 s30, s30, {EX}\nv_add_u32 v42, s30, v26")
    A("s_waitcnt vmcnt(0)\nv_rcp_f32 v11, v11")
    for i in range(4): A(f"v_lshlrev_b32 v{44+2*i}, 16, v{12+i}\nv_and_b32 v{45+2*i}, 0xffff0000, v{12+i}")
    for i in range(8): A(f"v_sub_f32 v{52+i}, v{44+i}, v10\nv_mul_f32 v{52+i}, v{52+i}, v11")
    A("s_waitcnt lgkmcnt(0)\ns_barrier")
    A("ds_read_b64_tr_b16 v[60:61], v42\nds_read_b64_tr_b16 v[62:63], v42 offset:512")
    for w in range(4): A(f"ds_read_b128 {vr(64+8*w,4)}, v40 offset:{w*16384}\nds_read_b128 {vr(68+8*w,4)}, v41 offset:{w*16384}")
    A("s_waitcnt lgkmcnt(8)")
    for i in range(4):
        A(f"v_lshlrev_b32 v26, 16, v{60+i}\nv_and_b32 v27, 0xffff0000, v{60+i}\nv_fma_f32 v{44+2*i}, v{52+2*i}, v26, v{44+2*i}\nv_fma_f32 v{45+2*i}, v{53+2*i}, v27, v{45+2*i}")
    for w in range(4):
        A(f"s_waitcnt lgkmcnt({6-2*w})")
        for i in range(0,8,2): A(f"v_pk_add_f32 {vr(44+i,2)}, {vr(44+i,2)}, {vr(64+8*w+i,2)}")
    for i in range(4): A(f"v_cvt_pk_bf16_f32 v{60+i}, v{44+2*i}, v{45+2*i}")
    A("buffer_store_dwordx4 v[60:63], v8, s[12:15], s21 offen")
    if ST:
        A("s_waitcnt vmcnt(0)"); stamp(A,5,ST)
        A("s_and_b32 s30, s20, 3\ns_cmp_lg_u32 s30, 0\ns_cbranch_scc1 K2_end\ns_mul_i32 s30, s20, 0x40000\ns_add_u32 s90, s90, s30\ns_addc_u32 s91, s91, 0")
        stamp_store(A,ST,1,0,6,8,"c")
    A("K2_end:\ns_endpgm")

HDR=open("parallel_sum__ssm_conv_h3__geglu_ffn__prompt.s.ref").read().split("; Override launch")[0]
def kd(n): return f""".p2align 6
.amdhsa_kernel {n}
  .amdhsa_next_free_vgpr 256
  .amdhsa_next_free_sgpr 102
  .amdhsa_accum_offset 256
  .amdhsa_group_segment_fixed_size 0
  .amdhsa_kernarg_size 104
  .amdhsa_user_sgpr_count 2
  .amdhsa_user_sgpr_kernarg_segment_ptr 1
  .amdhsa_system_sgpr_workgroup_id_x 1
.end_amdhsa_kernel"""
def build(fn, ST=False, only1=False, **kw):
    A=Asm()
    o=[HDR.rstrip("\n"), "; @launch kernel=k1_kernel grid=(256,1,1) block=(512,1,1) lds=149504"]
    if not only1: o.append(f"; @launch kernel=k2_kernel grid=(256,1,1) block=(512,1,1) lds={K2_LDS}")
    o.append('.amdgcn_target "amdgcn-amd-amdhsa--gfx950"\n.text')
    A.L.append(".globl k1_kernel\n.p2align 8\n.type k1_kernel,@function"); gen_k1(A,ST)
    if not only1:
        A.L.append(".globl k2_kernel\n.p2align 8\n.type k2_kernel,@function"); gen_k2(A,ST,**kw)
    A.L.append("K_codeend:")
    o+=A.L; o.append('.section .rodata,"a"'); o.append(kd("k1_kernel"))
    if not only1: o.append(kd("k2_kernel"))
    open(fn,"w").write("\n".join(o)+"\n")
if __name__=="__main__":
    build("parallel_sum__ssm_conv_h3__geglu_ffn__prompt.s")
    build("st.s", ST=True)
```
